```python
import torch

def _softmax(x, axis=-1):
    return torch.softmax(x, dim=axis)
def _gelu(x):
    return torch.nn.functional.gelu(x, approximate="tanh")
def _silu(x):
    return torch.nn.functional.silu(x)
def _sigmoid(x):
    return torch.sigmoid(x)
def _layernorm(x, axis=-1, eps=1e-5):
    m = x.mean(dim=axis, keepdim=True)
    v = x.var(dim=axis, keepdim=True, unbiased=False)
    return (x - m) / torch.sqrt(v + eps)
def _scatter_add(tgt, idx, src, axis=0):
    return tgt.clone().index_add_(axis, idx, src)
def _segment_sum(src, seg, n):
    out = torch.zeros((n,) + src.shape[1:], dtype=src.dtype)
    return out.index_add_(0, seg, src)
def _pad(x, pw):
    flat = tuple(v for pair in reversed(pw) for v in pair)
    return torch.nn.functional.pad(x, flat)

kernel_name = 'standalone__paged_block_table_kv_radixattention__sampling'

def setup_inputs():

    _w = (lambda a: (lambda t: t.to(torch.bfloat16) if t.is_floating_point() else t)(torch.as_tensor(a)))
    B, H, Hkv, Dh = 8, 16, 8, 256
    Lk = 2048
    bs = 16
    nb = max(2, Lk // bs)
    P = max(1, nb // 2)
    n_phys = P + B * (nb - P)
    shared = torch.arange(P, dtype=torch.int64)
    priv = P + torch.arange(B * (nb - P), dtype=torch.int64).reshape(B, nb - P)
    bt = torch.cat([torch.tile(shared[None, :], (B, 1)), priv], dim=1)
    ctx = nb * bs - (torch.arange(1, B + 1, dtype=torch.int64) * 2654435761) % max(1, (nb * bs - P * bs) // 2)
    return {
        "q": _w((lambda *s: torch.randn(*s, dtype=torch.bfloat16) * 0.8)(B, H, Dh)),
        "k_cache": _w((lambda *s: torch.randn(*s, dtype=torch.bfloat16) * 0.8)(n_phys, bs, Hkv, Dh)),
        "v_cache": _w((lambda *s: torch.randn(*s, dtype=torch.bfloat16) * 0.05)(n_phys, bs, Hkv, Dh)),
        "block_table": _w(bt.to(torch.int64)),
        "ctx_lens": _w(torch.as_tensor(ctx).to(torch.int64)),
    }

def reference(q, k_cache, v_cache, block_table, ctx_lens):
    B, H, Dh = q.shape
    n_phys, bs, Hkv, _ = k_cache.shape
    nb = block_table.shape[1]
    Lk = nb * bs
    rep = H // Hkv
    k = k_cache[block_table].reshape(B, Lk, Hkv, Dh)
    v = v_cache[block_table].reshape(B, Lk, Hkv, Dh)
    k = (lambda x, n, axis: torch.repeat_interleave(x, n, dim=axis))(k, rep, axis=2)
    v = (lambda x, n, axis: torch.repeat_interleave(x, n, dim=axis))(v, rep, axis=2)
    scores = torch.einsum("bhd,bkhd->bhk", q, k) * (Dh ** -0.5)
    pos = torch.arange(Lk)
    valid = pos[None, :] < ctx_lens[:, None]
    scores = torch.where(valid[:, None, :], scores, -1e9)
    p = _softmax(scores, axis=-1)
    return torch.einsum("bhk,bkhd->bhd", p, v)
```

```python
import re, sys
KN = "standalone__paged_block_table_kv_radixattention__sampling_kernel"
def add(text, K, kind):
    text = text.replace(f"{KN}:\n", f"{KN}:\n    s_memrealtime s[98:99]\n", 1)
    pat = re.compile(r"(    global_store_dword v\d+, v\d+, s\[16:17\] sc1\n)")
    assert len(pat.findall(text)) == 1
    pub = ("    s_getreg_b32 s96, hwreg(HW_REG_XCC_ID, 0, 4)\n    s_lshl_b32 s96, s96, 7\n    s_add_u32 s96, s96, 0x900000\n"
           "    v_mov_b32 v150, s96\n    v_mov_b32 v151, s98\n    global_store_dword v150, v151, s[18:19] sc1\n")
    text = pat.sub(lambda m: m.group(1) + pub, text)
    pat = re.compile(r"(    global_store_dwordx2 v\d+, v\[[\d:]+\], s\[14:15\][^\n]*\n)    s_endpgm\n")
    t = ["s_mov_b64 exec, -1", "v_and_b32 v1, 7, v0", "v_lshlrev_b32 v1, 7, v1", "v_add_u32 v1, 0x900000, v1",
         "global_load_dword v2, v1, s[18:19] sc1", "s_memrealtime s[84:85]", "s_waitcnt vmcnt(0) lgkmcnt(0)"]
    for i in range(8): t.append(f"v_readlane_b32 s{70+i}, v2, {i}")
    t.append("s_nop 1")
    for i in range(1, 8): t.append(f"s_sub_u32 s{70+i}, s{70+i}, s70")
    t.append("s_mov_b32 s70, 0")
    if kind == "range":
        t += ["s_mov_b32 s86, 0", "s_mov_b32 s87, 0"]
        for i in range(1, 8): t += [f"s_max_i32 s86, s86, s{70+i}", f"s_min_i32 s87, s87, s{70+i}"]
        t.append("s_sub_u32 s86, s86, s87")
    else:
        t += [f"s_add_u32 s86, s{70+int(kind)}, 200"]
    t += ["s_min_u32 s86, s86, 1000", f"s_mul_i32 s86, s86, {K}", "L_amp:", "s_memrealtime s[88:89]", "s_waitcnt lgkmcnt(0)",
          "s_sub_u32 s88, s88, s84", "s_cmp_lt_u32 s88, s86", "s_cbranch_scc1 L_amp", "s_endpgm"]
    return pat.sub(lambda m: m.group(1) + "".join("    " + x + "\n" if not x.endswith(":") else x + "\n" for x in t), text)
src = open("k14_hx.s").read()
for kind in ("range", "1", "2", "4", "7"):
    open(f"d_sk_{kind}.s", "w").write(add(src, 20, kind))
```

```python
import re

TRANS = ("v_exp_f32", "v_log_f32", "v_rcp_f32", "v_rsq_f32", "v_sqrt_f32", "v_sin_f32", "v_cos_f32")


def regs(tok):
    tok = tok.strip()
    tok = tok.lstrip("-")
    m = re.fullmatch(r"abs\((.*)\)|\|(.*)\|", tok)
    if m:
        tok = m.group(1) or m.group(2)
    m = re.fullmatch(r"([vsa])(\d+)", tok)
    if m:
        return {tok}
    m = re.fullmatch(r"([vsa])\[(\d+):(\d+)\]", tok)
    if m:
        return {f"{m.group(1)}{i}" for i in range(int(m.group(2)), int(m.group(3)) + 1)}
    if tok == "vcc":
        return {"vcc_lo", "vcc_hi"}
    if tok == "exec":
        return {"exec_lo", "exec_hi"}
    if tok in ("vcc_lo", "vcc_hi", "m0", "exec_lo", "exec_hi"):
        return {tok}
    return set()


def is_s(r):
    return r[0] == "s" or r.startswith("vcc")


def is_v(r):
    return (r[0] == "v" and not r.startswith("vcc")) or r[0] == "a"


class Ins:
    def __init__(self, text):
        self.text = text
        body = text.split(";")[0].strip()
        self.label = body[:-1] if body.endswith(":") else None
        self.real = bool(body) and self.label is None and not body.startswith(".")
        self.op = ""
        self.w = set(); self.r = set()
        self.states = 0
        self.kind = None
        self.dpp = False
        self.lanesel = set()
        self.srcc = set(); self.srcab = set()
        self.widestore = set()
        self.target = None
        self.passes = 0
        if not self.real:
            return
        parts = body.split(None, 1)
        op = self.op = parts[0]
        rest = parts[1] if len(parts) > 1 else ""
        rest = re.sub(r"op_sel(_hi)?:\[[^\]]*\]", "", rest).strip()
        ops = [o.strip() for o in rest.split(",")] if rest else []
        if ops:
            last = ops[-1].split()
            mods = last[1:] if last else []
            ops[-1] = last[0] if last else ""
        else:
            mods = []
        self.states = 1
        R = [regs(o) for o in ops]
        if op == "s_nop":
            self.states = int(ops[0], 0) + 1
            self.kind = "nop"
        elif op.startswith("v_mfma"):
            self.kind = "mfma"
            self.w = R[0]; self.srcab = R[1] | R[2]; self.srcc = R[3]; self.r = self.srcab | self.srcc
            self.passes = 4 if "16x16" in op else 8
        elif op.startswith("v_"):
            self.kind = "valu"
            self.dpp = any(m.startswith(("row_", "quad_perm", "wave_")) for m in mods)
            if op.startswith("v_permlane"):
                self.w = R[0] | R[1]; self.r = R[0] | R[1]
            elif op.startswith(("v_readlane", "v_readfirstlane")):
                self.w = R[0]; self.r = R[1]
                if len(R) > 2:
                    self.lanesel = R[2]
            elif op.startswith("v_writelane"):
                self.w = R[0]; self.r = R[0] | R[1]; self.lanesel = R[2]
            elif "_co_" in op:
                self.w = R[0] | R[1]; self.r = set().union(*R[2:])
            else:
                self.w = R[0]; self.r = set().union(*R[1:]) if len(R) > 1 else set()
                if op.startswith(("v_fmac", "v_pk_fmac")) or self.dpp:
                    self.r |= R[0]
        elif op.startswith(("buffer_", "global_")):
            self.kind = "vmem"
            allr = set().union(*R)
            if "load" in op and "lds" not in mods:
                self.w = R[0]; self.r = set().union(*R[1:])
            elif "atomic" in op and "sc0" in mods and op.startswith("global_"):
                self.w = R[0]; self.r = set().union(*R[1:])
            else:
                self.r = allr
                if "lds" in mods:
                    self.r |= {"m0"}
                if "atomic" in op and "sc0" in mods:
                    self.w = R[0]
                if op.endswith(("x4", "x3")) and "store" in op:
                    self.widestore = R[0] if op.startswith("buffer_") else R[1]
        elif op.startswith("ds_"):
            self.kind = "ds"
            if op.startswith(("ds_read", "ds_bpermute", "ds_permute", "ds_swizzle")) or "_rtn" in op:
                self.w = R[0]; self.r = set().union(*R[1:])
            else:
                self.r = set().union(*R)
        elif op.startswith(("s_branch", "s_cbranch")):
            self.kind = "branch"; self.target = ops[0]
        else:
            self.kind = "salu"
            if op.startswith(("s_cmp", "s_bitcmp", "s_waitcnt", "s_barrier", "s_setprio", "s_sleep", "s_endpgm")):
                self.r = set().union(*R) if R else set()
            elif R:
                self.w = R[0]; self.r = set().union(*R[1:]) if len(R) > 1 else set()
                if "saveexec" in op:
                    self.w = self.w | {"exec_lo", "exec_hi"}


def need(p, c):
    n = 0
    if p.kind == "valu":
        wv = {r for r in p.w if is_v(r)}
        ws = {r for r in p.w if is_s(r)}
        if c.kind == "valu":
            if c.dpp and wv & c.r: n = max(n, 2)
            if c.op.startswith("v_permlane") and wv & c.r: n = max(n, 2)
            if c.op.startswith(("v_readlane", "v_readfirstlane")) and wv & c.r: n = max(n, 1)
            if ws & c.r: n = max(n, 2)
            if ws & c.lanesel: n = max(n, 4)
            if p.op.startswith(TRANS) and wv & c.r: n = max(n, 1)
        if c.kind == "vmem" and ws & c.r: n = max(n, 5)
        if c.kind == "mfma" and wv & c.r: n = max(n, 2)
        if c.kind == "salu" and ws & c.r: n = max(n, 1)
        if c.kind == "branch" and "vcc" in c.op and ws & {"vcc_lo", "vcc_hi"}: n = max(n, 1)
    if p.kind in ("vmem", "ds") and c.kind == "valu" and c.dpp and p.w & c.r:
        n = max(n, 2)
    if p.kind == "mfma":
        big = 8 if p.passes == 4 else 12
        if c.kind == "mfma":
            if p.w & c.srcab: n = max(n, big)
            if p.w & c.srcc and not (p.w == c.srcc and p.passes == c.passes): n = max(n, big - 2)
            if p.w & c.w and not (p.w == c.srcc): n = max(n, big - 2)
        elif c.kind in ("valu", "vmem", "ds"):
            if p.w & (c.r | c.w): n = max(n, big)
            if c.kind == "valu" and p.srcc & c.w: n = max(n, 3 if p.passes == 4 else 7)
    if p.kind == "vmem" and p.widestore & c.w:
        n = max(n, 2)
    if p.kind == "salu" and "m0" in p.w and "m0" in c.r:
        n = max(n, 1)
    return n


def missing(hist, c):
    dist = 0; short = 0
    for p in reversed(hist):
        short = max(short, need(p, c) - dist)
        dist += p.states
        if dist > 24:
            break
    return short


def finalize(lines):
    out = []
    hist = []
    for t in lines:
        i = Ins(t)
        if i.real:
            k = missing(hist, i)
            if k > 0:
                nop = Ins(f"s_nop {k-1}")
                out.append(nop); hist.append(nop)
            hist.append(i)
            if i.op in ("s_branch", "s_endpgm"):
                i.hist = list(hist[-30:]); hist = []
            elif i.kind == "branch":
                i.hist = list(hist[-30:])
        out.append(i)
    pos = {i.label: k for k, i in enumerate(out) if i.label}
    for i in out:
        if i.kind == "branch":
            h = list(i.hist); k = pos[i.target]; n = 0
            while k < len(out) and n < 24:
                c = out[k]; k += 1
                if not c.real:
                    continue
                s = missing(h, c)
                if s > 0:
                    raise RuntimeError(f"hazard across branch '{i.text}' at '{c.text}': {s} states short")
                h.append(c); n += c.states
                if c.op == "s_endpgm":
                    break
                if c.op == "s_branch":
                    k = pos[c.target]
    res = []
    for i in out:
        res.append(("    " + i.text.strip()) if i.real else i.text)
    return res
```

```python
import sys, struct
from asmlib import finalize

KN = "standalone__paged_block_table_kv_radixattention__sampling_kernel"
HEADER = open("standalone__paged_block_table_kv_radixattention__sampling.s.ref").read().split("; Override")[0]

REC = 1024
SLOT = REC + 128
NPROD = 24
INBOX = NPROD * SLOT
G = 3
LDS_BT, LDS_D, LDS_M, LDS_L, LDS_A, LDS_F, LDS_W, LDS_O, KVB = 0, 4096, 4608, 4864, 5120, 5248, 5376, 5632, 7680
LDS_Q = KVB + 2 * 8192
LDS_P = KVB + 18 * 8192
LDS_BYTES = KVB + 19 * 8192
ORDER = [4, 5, 0, 1, 2, 3] + list(range(6, 16))
NEGBIG = 0xF149F2CA
SCALE = struct.unpack("<I", struct.pack("<f", 1.4426950408889634 / 16.0))[0]
SPIN = 1 << 16
DPP = "row_mask:0xf bank_mask:0xf"


DOC = """
;
;   probabilities.
"""


def expected(extra):
    ctx = [2048 - ((i + 1) * 2654435761) % 512 for i in range(8)]
    S = 64
    pt = [c - 16 * S for c in ctx]
    Ct = (16 * S + sum(pt)) // 32 + extra
    u = [(p - Ct + ((b + 1) & 8) + 15) // 16 for b, p in enumerate(pt)]
    st = [S + sum(u[:b]) for b in range(8)]
    Np = S + sum(u)
    chain = [(st[b], ((64 + 64 * b - st[b]) << 6) | (u[b] - 1)) for b in range(8)]
    last = [64 + 64 * b + (pt[b] + 15) // 16 for b in range(8)]
    assert all(last[b] == last[0] + 69 * b - (32 if b >= 6 else 0) for b in range(8))
    assert all(-ctx[b] & 15 == b + 1 for b in range(8))
    assert Ct + 8 <= 256
    return dict(Ct=Ct, M=Np * 43691, chain=chain, last0=last[0])


def gen(mapping="headxcd", aux="nt", extra=20, b1slot=11, lead=5, trig=14, sflag=False, blate=True, b1p=11, retouch=False, recst=False, rnd=True, vall=None, kall=None, vprod=None, vend=15, taux="sc1", outaux="",
        stamps=False, amp=None, ampk=4, ampw="", badguess=False, remote=False, abl="", entrystamp=True, vthr=None, kthr=None, hop=True, vpre=False, btaux="", btprio=3, swarm=False):
    L = []
    a = L.append
    E = expected(extra)
    assert b1slot <= 11 and extra > 8
    diag = stamps or amp is not None

    def c(text):
        a("; " + text)

    def stamp(i):
        if stamps:
            a(f"s_memtime s[{84+2*i}:{85+2*i}]")
        if amp is not None and amp[0] == i:
            a("s_memrealtime s[80:81]")
        if amp is not None and amp[1] == i:
            a("s_memrealtime s[82:83]")

    def done():
        a("s_branch L_fin" if diag else "s_endpgm")

    sH, sRole, sW, sW4, sWi = "s20", "s21", "s22", "s23", "s60"
    sMore, sFirst, sLds, sLocal, sSpin, sGMask = "s40", "s62", "s63", "s54", "s37", "s46"
    sPred = "s[44:45]"
    vN, vG, vB = "v1", "v2", "v3"

    def role_decode():
        if mapping.startswith("perm"):
            a("s_and_b32 s3, s2, 7")
            a("s_lshl_b32 s3, s3, 2")
            a(f"s_lshr_b32 {sH}, 0x{mapping[4:][::-1]}, s3")
            a(f"s_and_b32 {sH}, {sH}, 7")
            a(f"s_lshr_b32 {sRole}, s2, 3")
        elif mapping.startswith("rot"):
            a(f"s_add_u32 {sH}, s2, {int(mapping[3:])}")
            a(f"s_and_b32 {sH}, {sH}, 7")
            a(f"s_lshr_b32 {sRole}, s2, 3")
        elif mapping == "headxcd":
            a(f"s_and_b32 {sH}, s2, 7")
            a(f"s_lshr_b32 {sRole}, s2, 3")
        else:
            a("s_and_b32 s3, s2, 7")
            a(f"s_lshr_b32 {sRole}, s2, 6")
            a(f"s_lshl3_add_u32 {sRole}, {sRole}, s3")
            a(f"s_bfe_u32 {sH}, s2, 0x30003")

    def lane_consts():
        a("v_and_b32 v0, 63, v0")
        a(f"v_and_b32 {vN}, 15, v0")
        a(f"v_lshrrev_b32 {vG}, 4, v0")
        a(f"v_lshrrev_b32 {vB}, 1, {vN}")

    def ws_srd():
        c("s[28:31]: a producer addresses its slot in the eight inboxes of the head, a consumer its own inbox")
        a(f"s_mul_i32 s3, {sH}, {8*INBOX}")
        a(f"s_mul_i32 s33, {sRole}, {INBOX}")
        a(f"s_sub_u32 s34, {sRole}, 8")
        a(f"s_mulk_i32 s34, {SLOT}")
        a(f"s_mov_b32 s30, {7*INBOX+SLOT}")
        a(f"s_cmp_lt_u32 {sRole}, 8")
        a("s_cselect_b32 s33, s33, s34")
        a(f"s_cselect_b32 s30, {INBOX}, s30")
        a("s_add_u32 s3, s3, s33")
        a("s_add_u32 s28, s18, s3")
        a("s_addc_u32 s29, s19, 0")
        a("s_mov_b32 s31, 0x20000")

    def voff(m):
        a(f"v_xor_b32 v{12+m}, {hex((m << 13) | (m << 5))}, v12")
        if m & 3:
            a(f"v_subrev_u32 v{12+m}, {(m & 3) * 1024}, v{12+m}")

    def kload(i, m):
        if m == 0:
            a(f"s_add_u32 m0, {sLds}, {i*32768}" if i else f"s_mov_b32 m0, {sLds}")
            a(f"s_mov_b32 s26, s{64+i}")
        if m == 4:
            a("s_addk_i32 m0, 0x1000")
        off = f" offset:{(m & 3) * 1024}" if m & 3 else ""
        a(f"buffer_load_dwordx4 v{12+m}, s[24:27], s{48+i} offen{off} {aux} lds")
        if kall is not None and i >= 1 and m & 1:
            a(f"s_waitcnt vmcnt({kall})")
        if kthr is not None and i >= 1 and m & 1:
            lab = f"L_kt{len(L)}"
            a(f"s_bitcmp1_b32 {sH}, 0")
            a(f"s_cbranch_scc0 {lab}")
            a(f"s_waitcnt vmcnt({kthr})")
            a(f"{lab}:")

    def kblock(i):
        a(f"s_cmp_eq_u32 s{64+i}, 0")
        a(f"s_cbranch_scc1 L_ks{i}")
        for m in range(8):
            kload(i, m)
        a(f"L_ks{i}:")

    def guess_lim(i):
        a("s_cmp_eq_u32 s34, s35")
        a("s_cselect_b32 s3, s38, 0")
        if i == 3:
            a("s_max_u32 s3, s3, s36")
        a("s_sub_u32 s3, 16, s3")
        a(f"s_max_i32 s{48+i}, s33, 0")
        a(f"s_max_u32 s3, s3, s{48+i}")
        a("s_lshl4_add_u32 s3, s34, s3")
        a(f"s_lshl_b32 s{64+i}, s3, 12")
        a(f"s_lshl4_add_u32 s3, s34, s{48+i}")
        a(f"s_lshl_b32 s{48+i}, s3, 12")
        a("s_cmp_lt_i32 s33, 16")
        a(f"s_cselect_b32 s{48+i}, s{48+i}, 0")
        a(f"s_cselect_b32 s{64+i}, s{64+i}, 0")

    a(f"{KN}:")
    if stamps:
        a("s_memrealtime s[80:81]")
    stamp(0)
    a("s_load_dwordx2 s[24:25], s[0:1], 8")
    a("s_load_dwordx2 s[52:53], s[0:1], 0")
    a(f"v_readfirstlane_b32 {sW}, v0")
    a("s_cmpk_ge_u32 s2, 0x100")
    a("s_cbranch_scc1 L_end")
    if hop:
        a(f"s_cmpk_ge_u32 {sW}, 0x1c0")
        a("s_cbranch_scc1 L_hop")
    if vpre:
        a(f"s_cmpk_gt_u32 {sW}, 0x100")
        a("s_cbranch_scc1 L_v")
        a(f"s_cmpk_eq_u32 {sW}, 0x100")
        a("s_cbranch_scc1 L_vpre")
    else:
        a(f"s_cmpk_ge_u32 {sW}, 0x100")
        a("s_cbranch_scc1 L_v")
    c("---------------- K waves (0-3): slots w, w+4, w+8, w+12, started on a guess that the plan verifies")
    role_decode()
    a("v_bfe_u32 v20, v0, 5, 1")
    a("v_and_b32 v21, 31, v0")
    a("v_xor_b32 v21, v21, v20")
    a("v_lshlrev_b32 v21, 4, v21")
    a("v_lshl_or_b32 v22, v20, 12, v21")
    a(f"s_lshl_b32 s3, {sH}, 9")
    a("v_or_b32 v12, s3, v22")
    a(f"s_lshr_b32 {sWi}, {sW}, 6")
    a("s_mov_b32 s35, 63")
    a(f"s_cmp_lt_u32 {sRole}, 8")
    a("s_cbranch_scc0 L_gp")
    a(f"s_mul_i32 s34, {sRole}, 69")
    a(f"s_cmp_ge_u32 {sRole}, 6")
    a("s_cselect_b32 s33, 32, 0")
    a("s_sub_u32 s34, s34, s33")
    a(f"s_add_u32 s34, s34, {sWi}")
    a(f"s_addk_i32 s34, {E['last0'] - 16 + (1 if badguess else 0)}")
    a(f"s_add_u32 s36, {sRole}, 1")
    a("s_and_b32 s33, s36, 7")
    a(f"s_lshl4_add_u32 s33, {sWi}, s33")
    a(f"s_sub_u32 s33, {256 - E['Ct']}, s33")
    a("s_mov_b32 s38, 0")
    a("s_branch L_k1")
    if vpre:
        c("wave 4 requests the block table and the context lengths from the entry page")
        a("L_vpre:")
        a("s_load_dwordx4 s[28:31], s[0:1], 24")
        a("s_setprio 3")
        a("v_and_b32 v112, 63, v0")
        a("v_lshlrev_b32 v112, 3, v112")
        a("v_and_b32 v113, 14, v0")
        a("v_lshlrev_b32 v113, 1, v113")
        a("s_waitcnt lgkmcnt(0)")
        for b in range(8):
            a(f"global_load_dwordx2 v[{128+2*b}:{129+2*b}], v112, s[28:29] offset:{512*b}")
        a("global_load_dword v7, v113, s[30:31]")
        a("s_branch L_v")
    a("L_gp:")
    a(f"s_sub_u32 s33, {sRole}, 7")
    a(f"s_mul_i32 s33, s33, {E['M']}")
    a("s_lshr_b32 s36, s33, 16")
    a(f"s_sub_u32 s33, s33, {E['M']}")
    a("s_lshr_b32 s33, s33, 16")
    a("s_add_u32 s34, s36, 15")
    a("s_lshr_b32 s34, s34, 4")
    a("s_sub_u32 s36, 0, s36")
    a("s_and_b32 s36, s36, 15")
    a(f"s_add_u32 s34, s34, {sWi}")
    a("s_sub_u32 s34, s34, 16")
    a("s_lshl_b32 s3, s34, 4")
    a("s_sub_u32 s33, s33, s3")
    for bnd, val in E["chain"]:
        a(f"s_cmpk_ge_i32 s34, {bnd}")
        a(f"s_cmovk_i32 s35, {val}")
    a("s_lshr_b32 s3, s35, 6")
    a("s_add_u32 s34, s34, s3")
    a("s_and_b32 s35, s35, 63")
    a("s_bfe_u32 s38, s34, 0x30006")
    a(f"s_add_u32 s38, s38, {E['Ct'] & 15}")
    a("s_and_b32 s38, s38, 15")
    a("s_cmp_eq_u32 s35, 63")
    a("s_cselect_b32 s38, 0, s38")
    a("L_k1:")
    a("s_sub_u32 s39, 63, s35")
    a("s_andn2_b32 s3, s34, 63")
    a("s_add_u32 s35, s35, s3")
    a(f"s_lshl_b32 {sLds}, {sW}, 7")
    a(f"s_addk_i32 {sLds}, {KVB + 3 * 8192}")
    a("s_mov_b32 s27, 0x20000")
    guess_lim(0)
    a("s_cbranch_scc0 L_k0skip")
    if entrystamp:
        stamp(7)
    a("s_waitcnt lgkmcnt(0)")
    stamp(1)
    for m in range(8):
        if m:
            voff(m)
        kload(0, m)
    a("s_branch L_k0done")
    a("L_k0skip:")
    for m in range(1, 8):
        voff(m)
    a("s_waitcnt lgkmcnt(0)")
    a("L_k0done:")
    c("each K wave stages four of the sixteen query rows of this head")
    a("v_lshl_or_b32 v21, v20, 9, v21")
    a(f"s_mul_i32 s3, {sW}, 0x101")
    a("v_xor_b32 v21, s3, v21")
    a(f"v_xor_b32 v22, {hex((1 << 13) | (1 << 5))}, v21")
    a("v_subrev_u32 v22, 0x400, v22")
    a(f"s_lshl_b32 s3, {sW}, 5")
    a(f"s_add_u32 m0, s3, {LDS_Q}")
    a("s_mov_b32 s54, 0x10000")
    a("s_mov_b32 s55, 0x20000")
    a(f"s_lshl_b32 s3, {sH}, 10")
    if 'q' not in abl:
        a("buffer_load_dwordx4 v21, s[52:55], s3 offen lds")
        a("buffer_load_dwordx4 v22, s[52:55], s3 offen offset:1024 lds")
    a("s_load_dwordx16 s[4:19], s[0:1], 0")
    a(f"s_lshr_b32 {sW4}, {sW}, 4")
    a(f"s_cmp_eq_u32 {sWi}, 3")
    a("s_cselect_b32 s36, s36, 0")
    for i in range(1, 4):
        a("s_add_u32 s34, s34, 4")
        a("s_cmp_gt_i32 s34, s35")
        a("s_cselect_b32 s3, s39, 0")
        a("s_cselect_b32 s39, 0, s39")
        a("s_add_u32 s34, s34, s3")
        a("s_sub_u32 s33, s33, 64")
        guess_lim(i)

    vD, vMlOff, vMrun, vMl, vCg, vNi, vB1, vZ = "v28", "v29", "v30", "v31", "v120", "v121", "v122", "v123"
    vMpub, vFlag, vLrun, vFa = "v140", "v141", "v142", "v139"
    vCtx, vScale = "v7", "v8"
    QF, KF, SA, PK, TT = 32, 64, 96, 112, 128
    lane_consts()
    a(f"v_xor_b32 v20, {vG}, {vN}")
    a("v_lshlrev_b32 v20, 4, v20")
    a(f"v_lshl_or_b32 v20, {vN}, 9, v20")
    for k in range(1, 4):
        a(f"v_xor_b32 v{20+k}, {64*k}, v20")
    a(f"v_lshlrev_b32 {vD}, 5, {vN}")
    a(f"v_mov_b32 {vZ}, 0")
    a(f"v_mov_b32 {vMrun}, {hex(NEGBIG)}")
    a(f"v_mov_b32 {vLrun}, 0")
    a(f"s_mov_b32 {sFirst}, 1")
    a(f"s_mov_b32 {sSpin}, {SPIN}")
    a("L_k12:")
    a("s_cmp_lg_u32 s65, 0")
    a("s_cbranch_scc1 L_kq1")
    a("s_waitcnt vmcnt(0)")
    a("L_kq1:")
    kblock(1)
    kblock(2)
    kblock(3)
    a("s_waitcnt vmcnt(24)")
    stamp(2)
    a("s_barrier")
    a(f"ds_read_b128 v[4:7], {vD} offset:{LDS_D}")
    a(f"ds_read_b128 v[8:11], {vD} offset:{LDS_D+16}")
    a(f"s_cmp_eq_u32 {sFirst}, 0")
    a("s_cbranch_scc1 L_knoq")
    for kk in range(8):
        a(f"ds_read_b128 v[{QF+4*kk}:{QF+4*kk+3}], v{20+(kk&3)} offset:{LDS_Q+(kk>>2)*256}")
    for k in range(4):
        a(f"v_add_u32 v{20+k}, {sLds}, v{20+k}")
        a(f"v_add_u32 v{24+k}, 0x10000, v{20+k}")
    a("L_knoq:")

    def qk(i):
        base = 20 + (i >> 1) * 4
        for kk in range(8):
            a(f"ds_read_b128 v[{KF+4*kk}:{KF+4*kk+3}], v{base+(kk&3)} offset:{(i&1)*32768+(kk>>2)*256}")
        d = SA + 4 * i
        for kk in range(8):
            a(f"s_waitcnt lgkmcnt({7-kk})")
            src = "0" if kk == 0 else f"v[{d}:{d+3}]"
            a(f"v_mfma_f32_16x16x32_bf16 v[{d}:{d+3}], v[{KF+4*kk}:{KF+4*kk+3}], v[{QF+4*kk}:{QF+4*kk+3}], {src}")

    def mask_pre(i):
        a(f"s_and_b32 s3, s{56+i}, 15")
        a(f"s_lshr_b32 s33, s{56+i}, 9")
        a(f"s_bfe_u32 s34, s{56+i}, 0x50004")
        a(f"v_cmp_eq_u32 vcc, s3, {vB1}")
        a(f"v_subrev_u32 v126, s33, {vCtx}")
        a("v_min_i32 v126, s34, v126")
        a(f"v_sub_u32 v126, v126, {vCg}")
        a("s_cmp_eq_u32 s3, 0")
        a("s_cselect_b64 vcc, -1, vcc")
        a("v_cndmask_b32 v126, 0, v126, vcc")
        for r in range(4):
            a(f"v_cmp_lt_i32 s[{72+2*r}:{73+2*r}], {r}, v126")

    def mask_post(i):
        for r in range(4 if rnd else 0):
            a(f"v_cvt_pk_bf16_f32 v{SA+4*i+r}, 0, v{SA+4*i+r}")
        for r in range(4):
            a(f"v_mul_f32 v{SA+4*i+r}, v{SA+4*i+r}, {vScale}")
        for r in range(4):
            a(f"v_cndmask_b32 v{SA+4*i+r}, {vNi}, v{SA+4*i+r}, s[{72+2*r}:{73+2*r}]")

    a("s_waitcnt lgkmcnt(0)")
    qk(0)
    a(f"v_cmp_ne_u32 {sPred}, 0, v9")
    a(f"s_mov_b32 s3, {sWi}")
    for i in range(4):
        a(f"v_readlane_b32 s{72+i}, v4, s3")
        a(f"v_readlane_b32 s{68+i}, v5, s3")
        a(f"v_readlane_b32 s{56+i}, v6, s3")
        if i < 3:
            a("s_add_u32 s3, s3, 4")
    a(f"v_readfirstlane_b32 {sGMask}, v10")
    a(f"v_readfirstlane_b32 {sMore}, v11")
    a("s_xor_b64 s[68:69], s[64:65], s[68:69]")
    a("s_xor_b64 s[70:71], s[66:67], s[70:71]")
    a("s_xor_b64 s[72:73], s[48:49], s[72:73]")
    a("s_xor_b64 s[74:75], s[50:51], s[74:75]")
    a("s_or_b64 s[68:69], s[68:69], s[70:71]")
    a("s_or_b64 s[72:73], s[72:73], s[74:75]")
    a("s_or_b64 s[68:69], s[68:69], s[72:73]")
    a("s_cbranch_scc0 L_kok")
    a("v_mov_b32 v126, 1")
    a(f"ds_write_b32 {vZ}, v126 offset:{LDS_F}")
    a("L_kok:")
    a("s_waitcnt vmcnt(16)")
    qk(1)
    a("s_barrier")
    stamp(3)
    a(f"ds_read_b32 v127, {vZ} offset:{LDS_F}")
    ws_srd()
    a(f"v_mov_b32 {vNi}, 0xff800000")
    a(f"v_add_u32 {vB1}, 1, {vB}")
    a(f"v_lshlrev_b32 {vCg}, 2, {vG}")
    a("s_waitcnt lgkmcnt(0)")
    a("v_cmp_ne_u32 vcc, 0, v127")
    a("s_cbranch_vccnz L_kx")
    a("s_waitcnt vmcnt(8)")
    qk(2)
    for i in range(3):
        mask_pre(i)
        mask_post(i)
    a(f"v_max3_f32 v{TT}, {vMrun}, v{SA}, v{SA+1}")
    for i in range(1, 6):
        a(f"v_max3_f32 v{TT}, v{TT}, v{SA+2*i}, v{SA+2*i+1}")
    a(f"v_lshlrev_b32 {vMl}, 4, {vN}")
    a(f"v_add_u32 v{TT+2}, {sW4}, {vMl}")
    a(f"v_lshlrev_b32 v{TT+3}, 4, v0")
    a(f"s_mul_i32 s3, {sWi}, 0x208")
    a("s_and_b32 s3, s3, 0x408")
    a(f"s_add_u32 s3, s3, {LDS_P}")
    a(f"v_add_u32 v{TT+3}, s3, v{TT+3}")
    if sflag:
        c("wave 0 of a producer fetches the nonce and XCD of the eight inboxes of this head")
        a(f"s_cmp_ge_u32 {sRole}, 8")
        a(f"s_cselect_b32 s3, {sW}, 1")
        a("s_cmp_lg_u32 s3, 0")
        a("s_cbranch_scc1 L_knf")
        a(f"s_lshl_b32 s3, {sH}, 5")
        a("s_load_dwordx8 s[4:11], s[16:17], s3")
        a("L_knf:")
    a("s_waitcnt vmcnt(0)")
    stamp(4)
    qk(3)
    mask_pre(3)
    mask_post(3)
    for i in range(6, 8):
        a(f"v_max3_f32 v{TT}, v{TT}, v{SA+2*i}, v{SA+2*i+1}")
    for sw in ("v_permlane32_swap_b32", "v_permlane16_swap_b32"):
        a(f"v_mov_b32 v{TT+1}, v{TT}")
        a(f"{sw} v{TT}, v{TT+1}")
        a(f"v_max_f32 v{TT}, v{TT}, v{TT+1}")
    a(f"ds_write_b32 v{TT+2}, v{TT} offset:{LDS_M}")
    if not sflag:
        c("wave 0 of a producer fetches the nonce and XCD of the eight inboxes of this head")
        a(f"s_lshl_b32 s3, {sH}, 5")
        a(f"v_lshl_add_u32 {vFa}, {vB}, 2, s3")
        a(f"s_cmp_ge_u32 {sRole}, 8")
        a(f"s_cselect_b32 s3, {1 if ('m' in abl or 'l' in abl) else sW}, 1")
        a("s_cmp_lg_u32 s3, 0")
        a("s_cbranch_scc1 L_kmax")
        a(f"global_load_dword {vFlag}, {vFa}, s[16:17] sc1")
    c("workgroup-wide running max: wait for the four per-wave values")
    a("L_kmax:")
    a(f"ds_read_b128 v[{TT+4}:{TT+7}], {vMl} offset:{LDS_M}")
    a("s_waitcnt lgkmcnt(0)")
    a(f"v_max3_u32 v{TT+1}, v{TT+4}, v{TT+5}, v{TT+6}")
    a(f"v_max_u32 v{TT+1}, v{TT+1}, v{TT+7}")
    a(f"v_cmp_eq_u32 vcc, -1, v{TT+1}")
    a("s_cbranch_vccnz L_kmax")
    a(f"v_max3_f32 v{TT}, v{TT+4}, v{TT+5}, v{TT+6}")
    a(f"v_max_f32 v{TT+1}, v{TT}, v{TT+7}")
    for i in range(16):
        a(f"v_sub_f32 v{SA+i}, v{SA+i}, v{TT+1}")
    a(f"v_sub_f32 v{TT}, {vMrun}, v{TT+1}")
    for i in range(16):
        a(f"v_exp_f32 v{SA+i}, v{SA+i}")
    a(f"v_exp_f32 v{TT}, v{TT}")
    for i in range(8):
        a(f"v_cvt_pk_bf16_f32 v{PK+i}, v{SA+2*i}, v{SA+2*i+1}")
    for i in range(4):
        a(f"ds_write_b64 v{TT+3}, v[{PK+2*i}:{PK+2*i+1}] offset:{2048*i}")
    a(f"v_lshlrev_b32 v{TT+4}, 3, {vN}")
    a(f"ds_write_b64 v{TT+4}, v[{TT}:{TT+1}] offset:{LDS_A}")
    a(f"v_mov_b32 {vMrun}, v{TT+1}")
    for i in range(8):
        a(f"v_add_f32 v{SA+i}, v{SA+i}, v{SA+8+i}")
    for i in range(4):
        a(f"v_add_f32 v{SA+i}, v{SA+i}, v{SA+4+i}")
    a(f"v_add_f32 v{SA}, v{SA}, v{SA+1}")
    a(f"v_add_f32 v{SA+2}, v{SA+2}, v{SA+3}")
    a(f"v_add_f32 v{SA}, v{SA}, v{SA+2}")
    for sw in ("v_permlane32_swap_b32", "v_permlane16_swap_b32"):
        a(f"v_mov_b32 v{SA+1}, v{SA}")
        a(f"{sw} v{SA}, v{SA+1}")
        a(f"v_add_f32 v{SA}, v{SA}, v{SA+1}")
    a(f"ds_write_b32 v{TT+2}, v{SA} offset:{LDS_L}")
    c("a consumer keeps the running (max, sum) of its own two rows in lane parity order")
    a("v_and_b32 v126, 1, v0")
    a(f"s_lshl_b32 s3, {sRole}, 1")
    a("v_add_lshl_u32 v127, v126, s3, 4")
    a(f"s_cmp_lt_u32 {sRole}, 8")
    a("s_cselect_b64 vcc, -1, 0")
    a(f"v_cndmask_b32 {vMl}, {vMl}, v127, vcc")
    a(f"v_lshrrev_b32 v{TT+2}, 1, {vMl}")
    if sflag:
        a(f"s_cselect_b32 s3, 1, {sW}")
        a("s_cmp_lg_u32 s3, 0")
        a("s_cbranch_scc1 L_kns")
        a("v_mov_b32 v127, s4")
        for b in range(1, 8):
            a(f"v_writelane_b32 v127, s{4+b}, {b}")
        a(f"v_lshlrev_b32 {vFa}, 2, {vB}")
        a(f"ds_bpermute_b32 {vFlag}, {vFa}, v127")
        a("L_kns:")
    a("s_waitcnt lgkmcnt(0)")
    stamp(5)
    a("s_barrier")
    stamp(6)
    a(f"ds_read_b64 v[{TT}:{TT+1}], v{TT+2} offset:{LDS_A}")
    a(f"ds_read_b128 v[{TT+4}:{TT+7}], {vMl} offset:{LDS_L}")
    c("lanes 2p, 2p+1 stand for producer p of inbox (role & 7); s[52:53] = producers that feed it")
    a(f"v_lshrrev_b32 v{SA+4}, 1, v0")
    a(f"v_lshrrev_b32 v{SA+5}, v{SA+4}, v10")
    a(f"v_and_b32 v{SA+5}, 1, v{SA+5}")
    a(f"v_cmp_ne_u32 s[52:53], 0, v{SA+5}")
    a(f"v_mul_u32_u24 v{SA+5}, {SLOT}, v{SA+4}")
    a("s_waitcnt lgkmcnt(0)")
    a(f"v_fma_f32 {vLrun}, {vLrun}, v{TT}, v{TT+4}")
    a(f"v_add_f32 v{TT+5}, v{TT+5}, v{TT+6}")
    a(f"v_add_f32 {vLrun}, {vLrun}, v{TT+7}")
    a(f"v_mov_b32 {vMpub}, v{TT+1}")
    a(f"v_add_f32 {vLrun}, {vLrun}, v{TT+5}")
    a(f"s_cmp_lg_u32 {sMore}, 0")
    a("s_cbranch_scc1 L_kx")
    if 't' not in abl:
        c("wave 3 reads one word of two lines per slot of that inbox, so that L2 holds the hand-off lines whole")
        a(f"s_cmp_lg_u32 {sW4}, 12")
        a("s_cbranch_scc1 L_knt")
        a(f"s_and_b32 s3, {sRole}, 7")
        a(f"s_lshl3_add_u32 s3, {sH}, s3")
        a(f"s_mulk_i32 s3, {INBOX}")
        a(f"s_lshr_b32 s33, {sRole}, 3")
        a("s_lshl_b32 s33, s33, 8")
        a("s_add_u32 s3, s3, s33")
        a(f"v_lshl_add_u32 v127, v126, 7, v{SA+5}")
        a("v_add_u32 v127, s3, v127")
        a("s_mov_b64 exec, s[52:53]")
        a("s_cbranch_execz L_knx")
        a(f"global_load_dword v127, v127, s[18:19] {taux}")
        a("L_knx:")
        a("s_mov_b64 exec, -1")
        a("L_knt:")
    a(f"s_cmp_lt_u32 {sRole}, 8")
    a("s_cbranch_scc1 L_k_cons")
    c("---- producer: wave 0 picks the store flavour and publishes the (max, sum) records")
    a(f"s_cmp_lg_u32 {sW}, 0")
    a("s_cbranch_scc1 L_fin")
    if 'm' in abl or 'p' in abl:
        a("s_branch L_kp_end")
    a("v_lshlrev_b32 v126, 4, v126")
    a(f"s_movk_i32 s3, {INBOX}")
    a(f"v_mad_u32_u24 {vMlOff}, {vB}, s3, v126")
    if sflag:
        a(f"s_lshl_b32 s3, {sH}, 5")
        a(f"v_lshl_add_u32 {vFa}, {vB}, 2, s3")
    a("L_kp_flag:")
    a("s_waitcnt vmcnt(0)")
    a(f"v_cmp_eq_u32 vcc, 0, {vFlag}")
    a("s_getreg_b32 s3, hwreg(HW_REG_XCC_ID, 0, 4)")
    a(f"s_and_b64 vcc, vcc, {sPred}")
    a("s_cbranch_scc1 L_kp_reflag")
    a("L_kp_flagok:")
    a("s_add_u32 s3, s3, 1")
    a(f"v_and_b32 v126, 0xff, {vFlag}")
    a(f"v_mov_b32 v143, {vFlag}")
    a("v_cmp_ne_u32 vcc, s3, v126")
    a("v_mov_b32 v126, 1")
    a(f"s_and_b64 vcc, vcc, {sPred}")
    a("s_branch L_kp_far" if remote else "s_cbranch_scc1 L_kp_far")
    a(f"ds_write_b32 {vZ}, v126 offset:{LDS_F+4}")
    a("s_and_b32 exec_lo, s44, 0xffff")
    a("s_mov_b32 exec_hi, 0")
    a("s_cbranch_execz L_kp_end")
    a(f"buffer_store_dwordx4 v[140:143], {vMlOff}, s[28:31], 0 offen offset:{REC}")
    a("L_kp_end:")
    a("s_waitcnt lgkmcnt(0)")
    a("s_barrier")
    done()
    GA, GM, GW, GL, GD, AH, AL = 144, 147, 150, SA, 64, 32, 44
    MQ, GX, GY, GO = 56, 76, 80, 84
    vTab, vIdx, vOut, vOa, vLb, vSh, vRow = "v154", "v155", "v156", "v157", "v158", "v159", "v160"
    sLeft = "s47"

    def gen_addr():
        for k in range(G):
            a(f"ds_bpermute_b32 v{GA+k}, {vIdx}, {vTab} offset:{16*k}")
        a(f"v_add_u32 {vIdx}, {16*G}, {vIdx}")
        a(f"s_sub_i32 {sLeft}, {sLeft}, {4*G}")
        a(f"s_movk_i32 s3, {SLOT}")
        a("s_waitcnt lgkmcnt(0)")
        for k in range(G):
            a(f"v_subrev_u32 v{GA+k}, 1, v{GA+k}")
            a(f"v_and_b32 v{GM+k}, 31, v{GA+k}")
            a(f"v_lshl_add_u32 v{GM+k}, v{GM+k}, 3, {vRow}")
            a(f"v_mad_i32_i24 v{GA+k}, v{GA+k}, s3, {vLb}")

    def data_load(k):
        a(f"buffer_load_dwordx4 v[{GD+4*k}:{GD+4*k+3}], v{GA+k}, s[28:31], 0 offen sc1")

    def fetch():
        for k in range(G):
            data_load(k)
        for k in range(G):
            a(f"ds_read_b32 v{GW+k}, v{GM+k} offset:{LDS_W}")

    def weights():
        c("weight operands: high and low bf16 part, placed on the diagonal that selects one packed value")
        for k in range(G):
            a(f"v_and_b32 v{TT}, 0xffff0000, v{GW+k}")
            a(f"v_sub_f32 v{TT+1}, v{GW+k}, v{TT}")
            a(f"v_lshrrev_b32 v{TT}, {vSh}, v{TT}")
            a(f"v_lshrrev_b32 v{TT+1}, {vSh}, v{TT+1}")
            for q in range(4):
                a(f"v_and_b32 v{AH+4*k+q}, v{MQ+q}, v{TT}")
                a(f"v_and_b32 v{AL+4*k+q}, v{MQ+q}, v{TT+1}")

    def pair_reduce(op, x, t):
        for r in (2, 4, 8):
            a(f"{op}_dpp {x}, {x}, {x} row_ror:{r} {DPP}")
        for sw in ("v_permlane16_swap_b32", "v_permlane32_swap_b32"):
            a(f"v_mov_b32 {t}, {x}")
            a(f"{sw} {x}, {t}")
            a(f"{op} {x}, {x}, {t}")

    def own_check():
        a(f"v_max3_u32 v{TT+2}, v{GO}, v{GO+1}, v{GO+2}")
        a(f"v_max_u32 v{TT+2}, v{TT+2}, v{GO+3}")
        a(f"v_cmp_eq_u32 vcc, -1, v{TT+2}")

    a(".p2align 12")
    a("L_hop:")
    a("s_branch L_hop2")
    c("---- consumer: gather the partials of the producers and finish two output rows")
    a("L_k_cons:")
    if 'g' in abl:
        a("s_mov_b64 s[52:53], 0")
        a(f"s_mov_b32 {sGMask}, 0")
    a(f"v_lshl_add_u32 {vMlOff}, v126, 4, v{SA+5}")
    a(f"v_cndmask_b32 {vMlOff}, 2.0, {vMlOff}, s[52:53]")
    if not blate:
        a(f"s_cmp_lg_u32 {sW}, 0")
        a("s_cbranch_scc1 L_kc_norec")
        a(f"buffer_load_dwordx4 v[{GL}:{GL+3}], {vMlOff}, s[28:31], 0 offen offset:{REC} sc1")
        a("L_kc_norec:")
    a(f"ds_read_b32 {vFlag}, {vZ} offset:{LDS_F+4}")
    c("table of expected producers: lane r receives 1 + the r-th set bit of the gather mask")
    a(f"v_mbcnt_lo_u32_b32 v{TT}, {sGMask}, 0")
    a(f"s_mov_b32 vcc_lo, {sGMask}")
    a("s_mov_b32 vcc_hi, 0")
    a(f"v_cndmask_b32 v{TT}, 63, v{TT}, vcc")
    a(f"v_lshlrev_b32 v{TT}, 2, v{TT}")
    a(f"v_add_u32 v{TT+1}, 1, v0")
    a(f"ds_permute_b32 {vTab}, v{TT}, v{TT+1}")
    a(f"s_bcnt1_i32_b32 {sLeft}, {sGMask}")
    a(f"v_lshlrev_b32 {vIdx}, 2, {vG}")
    a(f"s_lshl_b32 s3, {sW4}, 6")
    a(f"v_lshl_add_u32 {vLb}, {vN}, 4, s3")
    a(f"v_bfe_u32 {vRow}, v0, 3, 1")
    c("own values, output offset and arming of the own slot in LDS")
    a(f"v_and_b32 v{TT+2}, 1, {vG}")
    a(f"v_lshl_add_u32 v{TT+2}, {vRow}, 1, v{TT+2}")
    a(f"v_and_b32 v{TT+3}, 7, v0")
    a(f"v_lshl_add_u32 {vOa}, v{TT+2}, 3, v{TT+3}")
    a(f"s_lshl_b32 s3, {sW4}, 7")
    a(f"v_lshl_add_u32 {vOa}, {vOa}, 4, s3")
    for i in range(4):
        a(f"v_mov_b32 v{GO+i}, -1")
        a(f"v_mov_b32 v{GX+i}, 0")
    a(f"ds_write_b128 {vOa}, v[{GO}:{GO+3}] offset:{LDS_O}")
    a(f"v_and_b32 {vOut}, 6, v0")
    a(f"v_lshlrev_b32 {vOut}, 2, {vOut}")
    a(f"v_lshl_add_u32 {vOut}, v{TT+2}, 5, {vOut}")
    a(f"v_lshl_add_u32 {vOut}, v126, 9, {vOut}")
    a(f"s_lshl_b32 s3, {sRole}, 13")
    a(f"s_lshl_b32 s33, {sH}, 10")
    a("s_add_u32 s3, s3, s33")
    a(f"s_lshl_b32 s33, {sW4}, 5")
    a("s_add_u32 s3, s3, s33")
    a(f"v_add_u32 {vOut}, s3, {vOut}")
    a(f"v_lshlrev_b32 {vRow}, 2, {vRow}")
    a(f"v_lshlrev_b32 {vSh}, 4, v126")
    a(f"v_sub_u32 {vSh}, 16, {vSh}")
    a(f"v_mov_b32 v{TT+4}, 0xffff0000")
    a(f"v_lshrrev_b32 v{TT+4}, {vSh}, v{TT+4}")
    a(f"v_lshrrev_b32 v{TT+3}, 1, v{TT+3}")
    for q in range(4):
        a(f"v_cmp_eq_u32 s[{68+2*q}:{69+2*q}], {q}, v{TT+3}")
    for q in range(4):
        a(f"v_cndmask_b32 v{MQ+q}, 0, v{TT+4}, s[{68+2*q}:{69+2*q}]")
    a("v_lshlrev_b32 v126, 2, v126")
    a(f"s_mov_b32 s61, {SPIN}")
    a("s_mov_b32 s58, 0x55555555")
    a("s_mov_b32 s59, 0xaaaaaaaa")
    a("s_waitcnt lgkmcnt(0)")
    gen_addr()
    a(f"s_cmp_lg_u32 {sW}, 0")
    a("s_cbranch_scc1 L_kc_b")
    if blate:
        if recst:
            stamp(4)
        a(f"buffer_load_dwordx4 v[{GL}:{GL+3}], {vMlOff}, s[28:31], 0 offen offset:{REC} sc1")
        if recst:
            stamp(5)
            a("s_waitcnt vmcnt(0)")
            stamp(6)
    c("wave 0: normalised weight of every partial (lanes 48, 49 stand for this workgroup's own)")
    a("L_kc_rec:")
    a("s_waitcnt vmcnt(0)")
    a(f"v_cmp_ne_u32 vcc, v{GL+1}, {vFlag}")
    a(f"v_cmp_ne_u32 s[34:35], v{GL+3}, {vFlag}")
    a("s_or_b64 vcc, vcc, s[34:35]")
    a("s_and_b64 vcc, vcc, s[52:53]")
    a("s_cbranch_scc1 L_kc_rerec")
    a("L_kc_recok:")
    a(f"v_cmp_eq_u32 vcc, 24, v{SA+4}")
    a(f"v_mov_b32 v{TT}, {hex(NEGBIG)}")
    a(f"v_cndmask_b32 v{GL}, v{TT}, v{GL}, s[52:53]")
    a(f"v_cndmask_b32 v{GL}, v{GL}, {vMpub}, vcc")
    a(f"v_cndmask_b32 v{GL+2}, v{GL+2}, {vLrun}, vcc")
    a(f"v_mov_b32 v{TT}, v{GL}")
    pair_reduce("v_max_f32", f"v{TT}", f"v{TT+1}")
    a(f"v_sub_f32 v{GL}, v{GL}, v{TT}")
    a(f"v_exp_f32 v{GL}, v{GL}")
    a(f"v_mul_f32 v{TT}, v{GL}, v{GL+2}")
    pair_reduce("v_add_f32", f"v{TT}", f"v{TT+1}")
    a(f"v_rcp_f32 v{TT}, v{TT}")
    a(f"v_lshlrev_b32 v{TT+1}, 2, v0")
    a(f"v_mul_f32 v{GL}, v{GL}, v{TT}")
    a(f"ds_write_b32 v{TT+1}, v{GL} offset:{LDS_W}")
    a("s_waitcnt lgkmcnt(0)")
    a("L_kc_b:")
    stamp(3)
    if stamps:
        a(f"s_mov_b32 s55, {sSpin}")
    a("s_barrier")
    stamp(2)
    fetch()
    a(f"ds_read_b32 v162, v126 offset:{LDS_W+192}")
    a("L_kc_w:")
    a("s_waitcnt lgkmcnt(0)")
    weights()
    a("L_kc_poll:")
    a("s_waitcnt vmcnt(0)")
    if stamps:
        a(f"s_cmp_lg_u32 {sSpin}, s55"); a("s_cbranch_scc1 L_nost"); stamp(1); a("L_nost:")
    def comb(n):
        k, w = n >> 1, (AL if n & 1 else AH)
        src = GX if n == 0 else GY
        a(f"v_mfma_f32_16x16x32_bf16 v[{GY}:{GY+3}], v[{w+4*k}:{w+4*k+3}], v[{GD+4*k}:{GD+4*k+3}], v[{src}:{src+3}]")

    def finish():
        a("s_mov_b64 exec, s[58:59]")
        for j in range(2):
            a(f"v_pk_fma_f32 v[{GY+2*j}:{GY+2*j+1}], v[{GO+2*j}:{GO+2*j+1}], v[162:163], v[{GY+2*j}:{GY+2*j+1}] op_sel_hi:[1,0,1]")
        a(f"v_cvt_pk_bf16_f32 v{GY}, v{GY}, v{GY+1}")
        a(f"v_cvt_pk_bf16_f32 v{GY+1}, v{GY+2}, v{GY+3}")
        stamp(7)
        a(f"global_store_dwordx2 {vOut}, v[{GY}:{GY+1}], s[14:15] {outaux}")
        done()

    comb(0)
    for k in range(G):
        a(f"v_max3_u32 v{TT+3+k}, v{GD+4*k}, v{GD+4*k+1}, v{GD+4*k+2}")
    comb(1)
    for k in range(G):
        a(f"v_max_u32 v{TT+3+k}, v{TT+3+k}, v{GD+4*k+3}")
    comb(2)
    for k in range(G):
        a(f"v_cmp_eq_u32 s[{68+2*k}:{69+2*k}], -1, v{TT+3+k}")
    a(f"ds_read_b128 v[{GO}:{GO+3}], {vOa} offset:{LDS_O}")
    comb(3)
    a("s_or_b64 vcc, s[68:69], s[70:71]")
    a("s_or_b64 vcc, vcc, s[72:73]")
    a("s_cbranch_scc1 L_kc_again")
    a("L_kc_got:")
    comb(4)
    a(f"s_cmp_gt_i32 {sLeft}, 0")
    comb(5)
    a("s_cbranch_scc1 L_kc_chunk")
    a("s_waitcnt lgkmcnt(0)")
    own_check()
    a("s_cbranch_vccnz L_kc_own")
    finish()
    a("L_kc_own:")
    a(f"ds_read_b128 v[{GO}:{GO+3}], {vOa} offset:{LDS_O}")
    a("s_sub_u32 s61, s61, 1")
    a("s_cselect_b64 s[34:35], 0, -1")
    a("s_waitcnt lgkmcnt(0)")
    own_check()
    a("s_and_b64 vcc, vcc, s[34:35]")
    a("s_cbranch_scc1 L_kc_own")
    finish()
    a("L_hop2:")
    a("s_branch L_v")
    c("reload exactly the lanes that still hold a sentinel")
    a("L_kc_again:")
    for k in range(G):
        a(f"s_mov_b64 exec, s[{68+2*k}:{69+2*k}]")
        a(f"s_cbranch_execz L_rl{k}")
        data_load(k)
        a(f"L_rl{k}:")
    a("s_mov_b64 exec, -1")
    a(f"s_sub_u32 {sSpin}, {sSpin}, 1")
    a("s_cbranch_scc0 L_kc_poll")
    a(f"s_mov_b32 {sSpin}, 0")
    a("s_branch L_kc_got")
    a("L_kc_rerec:")
    a(f"s_sub_u32 {sSpin}, {sSpin}, 1")
    a("s_cbranch_scc1 L_kc_giveup")
    a(f"buffer_load_dwordx4 v[{GL}:{GL+3}], {vMlOff}, s[28:31], 0 offen offset:{REC} sc1")
    a("s_branch L_kc_rec")
    a("L_kc_giveup:")
    a(f"s_mov_b32 {sSpin}, 0")
    a("s_branch L_kc_recok")

    sS, sNp, sStart, sN, sRb, sLimCtx, sEndP, sRound, sArm = "s36", "s38", "s39", "s43", "s41", "s42", "s37", "s60", "s61"
    sT0, sT1, vCut = "s56", "s57", "v144"
    vS, vSt, vEnd, vPk, vU, vPriv = "v22", "v23", "v24", "v25", "v26", "v27"
    vD, vPa, vO, vPub = "v28", "v29", "v30", "v31"
    PF, AF, AC = 32, 64, 96
    T = [f"v{112+i}" for i in range(16)]
    BTR = 128
    c("---------------- V waves (4-7): one d-quarter each; wave 4 plans, wave 6 of a consumer announces the inbox")
    a("L_v:")
    a("s_load_dwordx16 s[4:19], s[0:1], 0")
    a(f"s_setprio {btprio}")
    role_decode()
    lane_consts()
    a(f"s_bfe_u32 {sW4}, {sW}, 0x40004")
    if not vpre:
        a("s_cbranch_scc1 L_v_setup")
        a(f"v_lshlrev_b32 {T[0]}, 3, v0")
        a(f"v_lshlrev_b32 {T[1]}, 2, {vB}")
        a("s_waitcnt lgkmcnt(0)")
        if 'b' in abl:
            a(f"v_lshrrev_b32 {T[2]}, 5, v0"); a(f"v_lshlrev_b32 {T[2]}, 6, {T[2]}"); a(f"v_lshlrev_b32 {T[3]}, 1, v0")
            for b in range(8):
                a(f"v_mad_u32_u24 v{BTR+2*b}, {T[2]}, {b}, {T[3]}"); a(f"v_add_u32 v{BTR+2*b+1}, 1, v{BTR+2*b}")
            a(f"v_add_u32 v7, 1, {vB}"); a("v_mul_u32_u24 v7, 433, v7"); a("v_and_b32 v7, 511, v7"); a("v_sub_u32 v7, 0x800, v7")
        else:
            if swarm:
                for g in range(3):
                    for k in range(11):
                        n = g * 11 + k
                        a(f"s_load_dword s{64+k}, s[10:11], {128*n}" if n < 32 else f"s_load_dword s{64+k}, s[12:13], 0")
                    a("s_waitcnt lgkmcnt(0)")
            for b in range(8):
                a(f"global_load_dwordx2 v[{BTR+2*b}:{BTR+2*b+1}], {T[0]}, s[10:11] offset:{512*b} {btaux}")
            a(f"global_load_dword v7, {T[1]}, s[12:13] {btaux}")
    a("L_v_setup:")
    a("s_waitcnt lgkmcnt(0)")
    ws_srd()
    a(f"s_cmp_lt_u32 {sRole}, 8")
    a(f"s_cselect_b32 {sArm}, {0 if 'm' in abl else sW4}, 0")
    a(f"s_cmp_eq_u32 {sArm}, 8")
    a("s_cbranch_scc0 L_v_noarm")
    a(f"v_lshrrev_b32 {T[9]}, 1, v0")
    a(f"v_and_b32 {T[10]}, 1, v0")
    a(f"v_lshlrev_b32 {T[10]}, 4, {T[10]}")
    a(f"s_movk_i32 s3, {SLOT}")
    a(f"v_mad_u32_u24 {T[9]}, {T[9]}, s3, {T[10]}")
    if 'r' not in abl:
        a(f"buffer_load_dwordx4 v[64:67], {T[9]}, s[28:31], 0 offen offset:{REC} sc1")
    a("L_v_noarm:")
    a("s_setprio 0")
    stamp(1)
    a("s_mov_b64 s[24:25], s[8:9]")
    a("s_mov_b32 s27, 0x20000")
    a(f"v_lshrrev_b32 {T[9]}, 3, v0")
    a(f"v_and_b32 {T[10]}, 6, {T[9]}")
    a(f"v_and_b32 {T[11]}, 7, v0")
    a(f"v_xor_b32 {T[10]}, {T[10]}, {T[11]}")
    a(f"v_lshlrev_b32 {T[10]}, 4, {T[10]}")
    a(f"v_lshl_or_b32 {T[10]}, {T[9]}, 12, {T[10]}")
    a(f"s_lshl_b32 s3, {sH}, 9")
    a(f"s_lshl_b32 s33, {sW4}, 5")
    a("s_add_u32 s3, s3, s33")
    a(f"v_add_u32 v12, s3, {T[10]}")
    a(f"v_add_u32 v13, {32768-1024}, v12")
    a(f"s_lshl_b32 {sLds}, {sW4}, 9")
    a(f"s_addk_i32 {sLds}, {KVB}")
    a(f"v_lshrrev_b32 {T[9]}, 2, v0")
    a(f"v_bfe_u32 {T[10]}, v0, 3, 2")
    a(f"v_lshlrev_b32 {T[10]}, 5, {T[10]}")
    a(f"v_lshl_or_b32 {T[10]}, {T[9]}, 7, {T[10]}")
    a(f"v_and_b32 {T[9]}, 3, v0")
    a(f"v_lshl_or_b32 {T[10]}, {T[9]}, 3, {T[10]}")
    for t in range(4):
        a(f"v_xor_b32 v{14+t}, {32*t}, {T[10]}")
        a(f"v_add_u32 v{14+t}, {sLds}, v{14+t}")
        a(f"v_add_u32 v{18+t}, 0x10000, v{14+t}")
    for i in range(16):
        a(f"v_mov_b32 v{AC+i}, 0")
    a(f"v_lshlrev_b32 {vD}, 5, {vN}")
    a(f"v_lshlrev_b32 {vPa}, 4, v0")
    a(f"v_add_u32 {vPa}, {LDS_P}, {vPa}")
    a(f"v_and_b32 {vO}, 1, v0")
    a(f"v_lshlrev_b32 {vO}, 4, {vO}")
    a(f"v_lshl_add_u32 {vO}, {vG}, 5, {vO}")
    a(f"s_movk_i32 s3, {INBOX}")
    a(f"v_mad_u32_u24 {vPub}, {vB}, s3, {vO}")
    a(f"s_lshl_b32 s3, {sW4}, 6")
    a(f"v_add_u32 {vPub}, s3, {vPub}")
    a(f"s_lshl_b32 s3, {sW4}, 7")
    a(f"v_add_u32 {vO}, s3, {vO}")
    a(f"s_mov_b32 {sFirst}, 1")
    a(f"s_mov_b32 {sRound}, 0")
    a("s_waitcnt vmcnt(0)")
    a(f"s_cmp_eq_u32 {sArm}, 8")
    a("s_cbranch_scc0 L_v_noflag")
    c("pick a nonce no record of this inbox carries yet and announce it together with the XCD id")
    a("s_getreg_b32 s33, hwreg(HW_REG_XCC_ID, 0, 4)")
    a("s_add_u32 s33, s33, 1")
    a("L_v_nonce:")
    a("s_addk_i32 s33, 0x100")
    a("v_cmp_eq_u32 vcc, s33, v65")
    a("v_cmp_eq_u32 s[34:35], s33, v67")
    a("s_or_b64 vcc, vcc, s[34:35]")
    a("s_cbranch_scc1 L_v_nonce")
    a(f"s_lshl3_add_u32 s3, {sH}, {sRole}")
    a("s_lshl_b32 s3, s3, 2")
    a(f"v_mov_b32 {T[9]}, s3")
    a(f"v_mov_b32 {T[10]}, s33")
    a(f"v_mov_b32 {T[11]}, 0")
    a("s_mov_b64 exec, 1")
    a("s_setprio 3")
    if 'f' not in abl:
        a(f"global_store_dword {T[9]}, {T[10]}, s[16:17] sc1")
    a("s_setprio 0")
    a(f"ds_write_b32 {T[11]}, {T[10]} offset:{LDS_F+4}")
    a("s_mov_b64 exec, -1")
    a("s_waitcnt lgkmcnt(0)")
    a("L_v_noflag:")
    a(f"s_cmp_lg_u32 {sW4}, 0")
    a("s_cbranch_scc1 L_vbq")
    c("---- plan: length of the prefix common to all rows, then the partition of the block list")
    for b in range(8):
        a(f"ds_write_b64 {T[0]}, v[{BTR+2*b}:{BTR+2*b+1}] offset:{LDS_BT+512*b}")
    for par in range(2):
        lo, hi = T[2 + 2 * par], T[3 + 2 * par]
        r = [f"v{BTR+2*b+par}" for b in range(8)]
        a(f"v_min3_u32 {lo}, {r[0]}, {r[1]}, {r[2]}")
        a(f"v_max3_u32 {hi}, {r[0]}, {r[1]}, {r[2]}")
        for x in (3, 5):
            a(f"v_min3_u32 {lo}, {lo}, {r[x]}, {r[x+1]}")
            a(f"v_max3_u32 {hi}, {hi}, {r[x]}, {r[x+1]}")
        a(f"v_min_u32 {lo}, {lo}, {r[7]}")
        a(f"v_max_u32 {hi}, {hi}, {r[7]}")
    a(f"v_cmp_ne_u32 vcc, {T[2]}, {T[3]}")
    a(f"v_cmp_ne_u32 s[34:35], {T[4]}, {T[5]}")
    a("v_cmp_gt_i32 s[48:49], 1, v7")
    a("s_ff1_i32_b64 s3, vcc")
    a("s_ff1_i32_b64 s33, s[34:35]")
    a("s_lshl_b32 s3, s3, 1")
    a("s_lshl1_add_u32 s33, s33, 1")
    a("s_min_u32 s3, s3, s33")
    c("an empty context masks every key alike: all 2048 positions with a zero score scale")
    a(f"v_mov_b32 {T[5]}, 0x800")
    a(f"v_min_i32 v7, v7, {T[5]}")
    a(f"v_mov_b32 v8, {hex(SCALE)}")
    a(f"v_cndmask_b32 v7, v7, {T[5]}, s[48:49]")
    a("v_cndmask_b32 v8, v8, 0, s[48:49]")
    a(f"v_max_i32_dpp {T[6]}, v7, v7 row_ror:2 {DPP}")
    a(f"v_add_u32 {vPriv}, 15, v7")
    a(f"v_lshrrev_b32 {vPriv}, 4, {vPriv}")
    a(f"v_max_i32_dpp {T[6]}, {T[6]}, {T[6]} row_ror:4 {DPP}")
    a(f"v_max_i32_dpp {T[6]}, {T[6]}, {T[6]} row_ror:8 {DPP}")
    a(f"v_add_u32 {vS}, 15, {T[6]}")
    a(f"v_lshrrev_b32 {vS}, 4, {vS}")
    a(f"v_readfirstlane_b32 {sLimCtx}, {T[6]}")
    a(f"v_min_u32 {vS}, s3, {vS}")
    a(f"v_sub_u32 {vPriv}, {vPriv}, {vS}")
    a(f"v_max_i32 {vPriv}, 0, {vPriv}")
    a(f"v_readfirstlane_b32 {sS}, {vS}")
    a(f"v_lshlrev_b32 {T[4]}, 4, {vS}")
    a(f"v_sub_u32 {T[5]}, v7, {T[4]}")
    a(f"v_max_i32 {T[5]}, 0, {T[5]}")
    a(f"v_add_u32_dpp {T[3]}, {T[5]}, {T[5]} row_ror:2 {DPP}")
    a(f"v_add_u32_dpp {T[3]}, {T[3]}, {T[3]} row_ror:4 {DPP}")
    a(f"v_add_u32_dpp {T[3]}, {T[3]}, {T[3]} row_ror:8 {DPP}")
    a(f"v_add_u32 {T[3]}, {T[3]}, {T[4]}")
    a(f"v_lshrrev_b32 {T[3]}, 5, {T[3]}")
    a(f"v_add_u32 {T[7]}, 1, {vB}")
    a(f"v_and_b32 {T[7]}, 8, {T[7]}")
    a(f"v_sub_u32 {T[3]}, {T[3]}, {T[7]}")
    a(f"v_add_u32 {T[3]}, {extra}, {T[3]}")
    a(f"v_sub_u32 {T[5]}, {T[5]}, {T[3]}")
    a(f"v_max_i32 {T[5]}, 0, {T[5]}")
    a(f"v_add_u32 {vCut}, {T[4]}, {T[5]}")
    a(f"v_add_u32 {vU}, 15, {T[5]}")
    a(f"v_lshrrev_b32 {vU}, 4, {vU}")
    a(f"v_add_u32_dpp {vEnd}, {vU}, {vU} row_shr:2 {DPP} bound_ctrl:1")
    a(f"v_add_u32_dpp {vEnd}, {vEnd}, {vEnd} row_shr:4 {DPP} bound_ctrl:1")
    a(f"v_add_u32_dpp {vEnd}, {vEnd}, {vEnd} row_shr:8 {DPP} bound_ctrl:1")
    a(f"v_add_u32 {vEnd}, {vEnd}, {vS}")
    a(f"v_sub_u32 {vSt}, {vEnd}, {vU}")
    a(f"v_readlane_b32 {sNp}, {vEnd}, 15")
    a(f"v_lshlrev_b32 {vPk}, 4, {vSt}")
    a(f"v_add3_u32 {vPk}, {vPk}, {vB}, 1")
    a(f"v_sub_u32 {vPk}, 0, {vPk}")
    a(f"s_mul_i32 {sNp}, {sNp}, 43691")
    a(f"s_mov_b32 {sRb}, 0")
    a(f"s_and_b32 s3, {sRole}, 7")
    a("s_lshl_b32 s3, s3, 1")
    a(f"v_mul_lo_u32 {T[3]}, v0, {sNp}")
    a(f"v_readlane_b32 s33, {vSt}, s3")
    a(f"v_readlane_b32 s37, {vEnd}, s3")
    a(f"v_add_u32 {T[4]}, {sNp}, {T[3]}")
    a(f"v_lshrrev_b32 {T[3]}, 16, {T[3]}")
    a(f"v_lshrrev_b32 {T[4]}, 16, {T[4]}")
    a(f"v_cmp_lt_u32 s[50:51], {T[3]}, {T[4]}")
    a(f"v_lshrrev_b32 {T[3]}, 4, {T[3]}")
    a(f"v_add_u32 {T[4]}, 15, {T[4]}")
    a(f"v_lshrrev_b32 {T[4]}, 4, {T[4]}")
    a(f"v_cmp_gt_u32 vcc, s37, {T[3]}")
    a(f"v_cmp_lt_u32 s[34:35], s33, {T[4]}")
    a(f"v_cmp_lt_u32 s[48:49], {T[3]}, {vS}")
    a("s_and_b32 s33, vcc_lo, s34")
    a("s_or_b32 s33, s33, s48")
    a("s_and_b32 s33, s33, s50")
    a("s_and_b32 s33, s33, 0xffffff")
    a("v_mov_b32 v10, s33")
    a(f"s_cmp_lt_u32 {sRole}, 8")
    a("s_cbranch_scc1 L_plan_c")
    a(f"s_sub_u32 s3, {sRole}, 8")
    a(f"s_mul_i32 {sT0}, s3, {sNp}")
    a(f"s_add_u32 {sT1}, {sT0}, {sNp}")
    a(f"s_lshr_b32 {sT0}, {sT0}, 16")
    a(f"s_lshr_b32 {sT1}, {sT1}, 16")
    a(f"s_lshr_b32 {sStart}, {sT0}, 4")
    a(f"s_add_u32 {sEndP}, {sT1}, 15")
    a(f"s_lshr_b32 {sEndP}, {sEndP}, 4")
    a(f"s_sub_u32 {sN}, {sEndP}, {sStart}")
    a(f"s_cmp_lt_u32 {sT0}, {sT1}")
    a(f"s_cselect_b32 {sN}, {sN}, 0")
    a(f"v_cmp_lt_u32 vcc, {sStart}, {vEnd}")
    a(f"v_cmp_gt_u32 s[34:35], {sEndP}, {vSt}")
    a("s_and_b64 vcc, vcc, s[34:35]")
    a(f"s_cmp_lt_u32 {sStart}, {sS}")
    a("s_cselect_b64 vcc, -1, vcc")
    a(f"s_cmp_lg_u32 {sN}, 0")
    a("s_cselect_b64 vcc, vcc, 0")
    a("v_cndmask_b32_e64 v9, 0, 1, vcc")
    a("s_branch L_round")
    a("L_plan_c:")
    a(f"v_readlane_b32 {sT0}, {T[5]}, s3")
    a(f"v_readlane_b32 {sN}, {vPriv}, s3")
    a(f"v_mov_b32 {vCut}, v7")
    a(f"v_cmp_eq_u32 s[52:53], {sRole}, {vB}")
    a(f"s_lshr_b32 {sStart}, {sT0}, 4")
    a(f"s_sub_u32 {sN}, {sN}, {sStart}")
    a(f"s_movk_i32 {sT1}, 0x7fff")
    a("v_cndmask_b32 v9, 0, 1, s[52:53]")
    c("slot descriptors of one round (lane & 15 = slot, blocks right-aligned)")
    a("L_round:")
    a(f"s_sub_u32 s3, {sN}, {sRb}")
    a("s_cmp_gt_u32 s3, 16")
    a("s_cselect_b32 s33, 1, 0")
    a("v_mov_b32 v11, s33")
    a("s_min_u32 s3, s3, 16")
    a("s_sub_u32 s3, 16, s3")
    a(f"v_cmp_le_u32 s[34:35], s3, {vN}")
    a(f"v_subrev_u32 {T[0]}, s3, {vN}")
    a(f"v_max_i32 {T[0]}, 0, {T[0]}")
    a(f"s_add_u32 s3, {sStart}, {sRb}")
    a(f"v_add_lshl_u32 {T[0]}, {T[0]}, s3, 4")
    a(f"v_sub_u32 {T[9]}, {sT0}, {T[0]}")
    a(f"v_max_i32 {T[9]}, 0, {T[9]}")
    a(f"v_sub_u32 {T[10]}, {sT1}, {T[0]}")
    a(f"v_or_b32 {T[0]}, 15, {T[0]}")
    a(f"s_add_u32 {sRb}, {sRb}, 16")
    a(f"s_cmp_lt_u32 {sRole}, 8")
    a("s_cbranch_scc0 L_round_p")
    a(f"s_add_u32 s3, {sRole}, 1")
    a(f"v_subrev_u32 {T[0]}, s3, {T[0]}")
    a("s_branch L_round_j")
    a("L_round_p:")
    for b in range(8):
        a(f"v_add_u32_dpp {T[1+b]}, {vPk}, {T[0]} row_newbcast:{2*b} {DPP}")
    a(f"v_min3_u32 {T[0]}, {T[0]}, {T[1]}, {T[2]}")
    a(f"v_min3_u32 {T[3]}, {T[3]}, {T[4]}, {T[5]}")
    a(f"v_min3_u32 {T[6]}, {T[6]}, {T[7]}, {T[8]}")
    a(f"v_min3_u32 {T[0]}, {T[0]}, {T[3]}, {T[6]}")
    a("L_round_j:")
    a(f"v_and_b32 {T[1]}, 15, {T[0]}")
    a(f"v_lshrrev_b32 {T[0]}, 4, {T[0]}")
    a(f"v_sub_u32 {T[1]}, 15, {T[1]}")
    a(f"v_min_u32 {T[2]}, 1, {T[1]}")
    a(f"v_mad_u32_u24 {T[0]}, {T[2]}, {vS}, {T[0]}")
    a(f"v_min_u32 {T[0]}, 0x7f, {T[0]}")
    a(f"v_sub_u32 {T[2]}, {T[1]}, {T[2]}")
    a(f"v_lshlrev_b32 {T[3]}, 2, {T[0]}")
    a(f"v_lshl_add_u32 {T[3]}, {T[2]}, 9, {T[3]}")
    a(f"v_lshlrev_b32 {T[4]}, 3, {T[2]}")
    a(f"ds_bpermute_b32 v5, {T[4]}, {vCut}")
    a(f"ds_read_b32 v4, {T[3]} offset:{LDS_BT}")
    a(f"v_lshlrev_b32 {T[0]}, 4, {T[0]}")
    a(f"v_cmp_eq_u32 vcc, 0, {T[1]}")
    a(f"v_mov_b32 {T[4]}, {sLimCtx}")
    a("s_waitcnt lgkmcnt(1)")
    a(f"v_cndmask_b32 v5, v5, {T[4]}, vcc")
    a(f"v_sub_u32 v5, v5, {T[0]}")
    a(f"v_min_i32 v5, v5, {T[10]}")
    a(f"v_med3_i32 v5, v5, {T[9]}, 16")
    a(f"v_add_u32 {T[0]}, {T[0]}, {T[9]}")
    a(f"v_sub_u32 {T[6]}, v5, {T[9]}")
    a(f"v_lshl_or_b32 {T[0]}, {T[0]}, 5, {T[6]}")
    a(f"v_lshl_or_b32 {T[0]}, {T[0]}, 4, {T[1]}")
    a(f"v_cndmask_b32 v6, 0, {T[0]}, s[34:35]")
    a("s_waitcnt lgkmcnt(0)")
    a(f"v_ashrrev_i32 {T[6]}, 31, v4")
    a(f"v_and_b32 {T[6]}, 576, {T[6]}")
    a(f"v_add_u32 v4, v4, {T[6]}")
    a("v_min_u32 v4, 575, v4")
    a("v_lshlrev_b32 v4, 16, v4")
    a("v_lshl_add_u32 v5, v5, 12, v4")
    a(f"v_lshl_add_u32 v4, {T[9]}, 12, v4")
    a("v_cndmask_b32 v5, 0, v5, s[34:35]")
    a("v_cndmask_b32 v4, 0, v4, s[34:35]")
    a(f"ds_write_b128 {vD}, v[4:7] offset:{LDS_D}")
    a(f"ds_write_b128 {vD}, v[8:11] offset:{LDS_D+16}")
    a(f"s_cmp_eq_u32 {sFirst}, 0")
    a("s_cbranch_scc1 L_vx")
    a("L_vinit:")
    a(f"v_lshlrev_b32 {T[0]}, 2, v0")
    a(f"v_mov_b32 {T[1]}, -1")
    a(f"v_mov_b32 {T[2]}, 0")
    a(f"ds_write_b32 {T[0]}, {T[1]} offset:{LDS_M}")
    a(f"ds_write_b32 {T[2]}, {T[2]} offset:{LDS_F}")
    a("s_waitcnt lgkmcnt(0)")
    a("s_branch L_vbq")

    def vdesc(i):
        a(f"v_readlane_b32 s{48+(i&1)}, v4, {ORDER[i]}")
        a(f"v_readlane_b32 s{50+(i&1)}, v5, {ORDER[i]}")

    def vslot(i):
        if i + 1 < 16:
            vdesc(i + 1)
        a(f"s_add_u32 m0, {sLds}, {i*8192}" if i else f"s_mov_b32 m0, {sLds}")
        a(f"s_mov_b32 s26, s{50+(i&1)}")
        a(f"buffer_load_dwordx4 v12, s[24:27], s{48+(i&1)} offen {aux} lds")
        a(f"buffer_load_dwordx4 v13, s[24:27], s{48+(i&1)} offen offset:1024 {aux} lds")
        if vprod is not None and 3 <= i < 15:
            a(f"s_cmp_lt_u32 {sRole}, 8")
            a(f"s_cbranch_scc1 L_vp{i}")
            a(f"s_waitcnt vmcnt({vprod})")
            a(f"L_vp{i}:")
        if vall is not None and 3 <= i < vend:
            a(f"s_waitcnt vmcnt({vall})")
        if vthr is not None and 3 <= i < 15:
            a(f"s_bitcmp1_b32 {sH}, 0")
            a(f"s_cbranch_scc0 L_vt{i}")
            a(f"s_waitcnt vmcnt({vthr})")
            a(f"L_vt{i}:")

    def trreads(pos):
        buf = AF + ((pos >> 1) & 1) * 16
        for t in range(4):
            d = buf + 4 * t + 2 * (pos & 1)
            a(f"ds_read_b64_tr_b16 v[{d}:{d+1}], v{14+4*(pos>>3)+t} offset:{(pos&7)*8192}")

    def mfma(q, t):
        buf = AF + (q & 1) * 16
        d = AC + 4 * t
        a(f"v_mfma_f32_16x16x32_bf16 v[{d}:{d+3}], v[{buf+4*t}:{buf+4*t+3}], v[{PF+4*q}:{PF+4*q+3}], v[{d}:{d+3}]")

    def trigger():
        a(f"s_cmp_lg_u32 {sMore}, 0")
        a("s_cbranch_scc1 L_v_nob")
        a("s_barrier")
        a("L_v_nob:")
        a(f"ds_read_b32 {T[3]}, {T[2]} offset:{LDS_F+4}")

    def flavour():
        a("s_waitcnt lgkmcnt(4)")
        a(f"s_mov_b32 {sLocal}, 1" if ('m' in abl or 'p' in abl) else f"v_readfirstlane_b32 {sLocal}, {T[3]}")
        a(f"s_cmp_eq_u64 {sPred}, 0")
        a(f"s_cselect_b32 {sLocal}, 0, {sLocal}")
        a(f"s_cmp_lt_u32 {sRole}, 8")
        a(f"s_cselect_b32 {sLocal}, 2, {sLocal}")
        a(f"s_cmp_lg_u32 {sMore}, 0")
        a(f"s_cselect_b32 {sLocal}, 3, {sLocal}")
        a(f"s_cmp_eq_u32 {sLocal}, 1")

    def pair(q, issued):
        if q < 7:
            a(f"s_waitcnt vmcnt({2*(issued-2*q-2)})" + (" lgkmcnt(0)" if q == 0 else ""))
            if trig == 2 * q + 1:
                trigger()
            trreads(2 * q)
        else:
            a("s_waitcnt vmcnt(2)")
            if trig == 14:
                trigger()
            trreads(2 * q)
            flavour()
            return
        trreads(2 * q + 1)
        for t in range(4):
            a(f"s_waitcnt lgkmcnt({3-t})")
            mfma(q, t)

    def publish(fl):
        for j in range(2):
            for i in range(4):
                a(f"v_cvt_pk_bf16_f32 v{AF+4*j+i}, v{AC+8*j+2*i}, v{AC+8*j+2*i+1}")
            off = " offset:128" if j else ""
            a(f"buffer_store_dwordx4 v[{AF+4*j}:{AF+4*j+3}], {vPub}, s[28:31], 0 offen{off} {fl}")

    a(".p2align 12")
    a("L_vbq:")
    stamp(2)
    a("s_barrier")
    a(f"ds_read_b64 v[4:5], {vD} offset:{LDS_D}")
    a(f"ds_read_b128 v[8:11], {vD} offset:{LDS_D+16}")
    a(f"v_mov_b32 {T[2]}, 0")
    a("s_waitcnt lgkmcnt(1)")
    vdesc(0)
    vslot(0)
    vslot(1)
    a("s_waitcnt lgkmcnt(0)")
    a(f"v_cmp_ne_u32 {sPred}, 0, v9")
    a(f"v_readfirstlane_b32 {sMore}, v11")
    if retouch:
        c("wave 6 of a consumer refreshes the record lines it expects, so they are whole in L2 when written")
        a(f"s_cmp_eq_u32 {sArm}, 8")
        a("s_cbranch_scc0 L_v_nort")
        a(f"v_lshrrev_b32 {T[4]}, v0, v10")
        a(f"v_and_b32 {T[4]}, 1, {T[4]}")
        a(f"v_cmp_ne_u32 vcc, 0, {T[4]}")
        a(f"v_mul_u32_u24 {T[4]}, {SLOT}, v0")
        a(f"v_cndmask_b32 {T[4]}, 2.0, {T[4]}, vcc")
        a(f"buffer_load_dword {T[5]}, {T[4]}, s[28:31], 0 offen offset:{REC} sc1")
        a("L_v_nort:")
    a(f"s_cmp_lt_u32 {sRole}, 8")
    a(f"s_cselect_b32 s3, 0, {0 if 'c' in abl else sFirst}")
    a(f"s_mov_b32 {sFirst}, 0")
    a("s_cmp_eq_u32 s3, 0")
    a("s_cbranch_scc1 L_vb0")
    c("producer: arm the lines this wave will publish (sixteen lanes per batch)")
    a(f"v_lshlrev_b32 {T[4]}, 1, {vG}")
    a(f"v_lshrrev_b32 {T[4]}, {T[4]}, s44")
    a(f"v_and_b32 {T[5]}, 1, {T[4]}")
    a(f"v_bfe_u32 {T[4]}, {T[4]}, 8, 1")
    a(f"v_cmp_ne_u32 vcc, 0, {T[5]}")
    a(f"v_cmp_ne_u32 s[34:35], 0, {T[4]}")
    a(f"v_lshlrev_b32 {T[5]}, 4, {vN}")
    a(f"s_movk_i32 s3, {INBOX}")
    a(f"v_mad_u32_u24 {T[4]}, {vG}, s3, {T[5]}")
    for i in range(4):
        a(f"v_mov_b32 v{AF+i}, -1")
    a(f"s_lshl_b32 s3, {sW4}, 6")
    a("s_mov_b64 exec, vcc")
    a("s_cbranch_execz L_v_clr0")
    a(f"buffer_store_dwordx4 v[{AF}:{AF+3}], {T[4]}, s[28:31], s3 offen")
    a("L_v_clr0:")
    a(f"s_add_u32 s3, s3, {4*INBOX}")
    a("s_mov_b64 exec, s[34:35]")
    a("s_cbranch_execz L_v_clr1")
    a(f"buffer_store_dwordx4 v[{AF}:{AF+3}], {T[4]}, s[28:31], s3 offen")
    a("L_v_clr1:")
    a("s_mov_b64 exec, -1")
    a("L_vb0:")
    a("s_barrier")
    stamp(3)
    a(f"ds_read_b32 {T[3]}, {T[2]} offset:{LDS_F}")
    vslot(2)
    a("s_waitcnt lgkmcnt(0)")
    a(f"v_cmp_ne_u32 vcc, 0, {T[3]}")
    a("s_cbranch_vccnz L_vx")
    for i in range(3, b1p):
        vslot(i)
    if b1p < b1slot:
        a(f"s_cmp_lt_u32 {sRole}, 8")
        a("s_cbranch_scc1 L_vb1p")
    a(f"s_waitcnt vmcnt({2*(b1p-2)})")
    stamp(4)
    a("s_barrier")
    if b1p < b1slot:
        a("L_vb1p:")
        for i in range(b1p, b1slot):
            vslot(i)
        a(f"s_cmp_lt_u32 {sRole}, 8")
        a("s_cbranch_scc0 L_vb1c")
        stamp(4)
        a("s_barrier")
        a("L_vb1c:")
    stamp(5)
    for q in range(8):
        a(f"ds_read_b128 v[{PF+4*q}:{PF+4*q+3}], {vPa} offset:{1024*(ORDER[2*q]//2)}")
    issued = b1slot
    vslot(issued); issued += 1
    a(f"s_cmp_lg_u32 {sRound}, 0")
    a("s_cbranch_scc1 L_vscale")
    a("L_vpv:")
    q = 0
    while issued < 16:
        n = 0
        while n < 2 and 2 * q + 2 + lead <= issued:
            pair(q, issued); q += 1; n += 1
        vslot(issued); issued += 1
    stamp(6)
    a("s_setprio 2")
    while q < 8:
        pair(q, 16); q += 1
    def last():
        a("s_waitcnt vmcnt(0)")
        trreads(15)
        for t in range(4):
            a(f"s_waitcnt lgkmcnt({3-t})")
            mfma(7, t)
        stamp(7)
        a(f"s_mov_b64 exec, {sPred}")

    a("s_cbranch_scc0 L_v_other")
    last()
    if 's' not in abl:
        publish("")
    done()
    a("L_v_other:")
    a(f"s_cmp_eq_u32 {sLocal}, 2")
    a("s_cbranch_scc0 L_v_rest")
    last()
    for t in range(4):
        a(f"ds_write_b128 {vO}, v[{AC+4*t}:{AC+4*t+3}] offset:{LDS_O+128*t}")
    done()
    a("L_v_rest:")
    last()
    a(f"s_cmp_eq_u32 {sLocal}, 3")
    a("s_cbranch_scc1 L_vnext")
    a("s_cbranch_execz L_fin")
    publish("sc1")
    done()
    a("L_vscale:")
    a(f"v_lshlrev_b32 {T[0]}, 3, {vN}")
    a(f"ds_read_b32 {T[0]}, {T[0]} offset:{LDS_A}")
    a("s_waitcnt lgkmcnt(0)")
    for i in range(16):
        a(f"v_mul_f32 v{AC+i}, v{AC+i}, {T[0]}")
    a("s_branch L_vpv")
    a("L_vnext:")
    a("s_mov_b64 exec, -1")
    a("s_setprio 0")
    a(f"s_mov_b32 {sRound}, 1")
    a(f"s_cmp_eq_u32 {sW4}, 0")
    a("s_cbranch_scc1 L_round")
    a("L_vx:")
    a("s_waitcnt vmcnt(0) lgkmcnt(0)")
    a("s_barrier")
    a(f"s_cmp_eq_u32 {sW4}, 0")
    a("s_cbranch_scc1 L_vinit")
    a("s_branch L_vbq")
    c("some target inbox lives on another XCD: arm and publish with write-through stores")
    a("L_kp_far:")
    a(f"ds_write_b32 {vZ}, {vZ} offset:{LDS_F+4}")
    for i in range(4):
        a(f"v_mov_b32 v{PK+i}, -1")
    a("v_lshlrev_b32 v126, 4, v0")
    a("s_and_b32 s33, s44, 0x5555")
    a("s_cbranch_scc0 L_kp_end")
    a("L_kclr:")
    a("s_ff1_i32_b32 s3, s33")
    a("s_bitset0_b32 s33, s3")
    a(f"s_mulk_i32 s3, {INBOX//2}")
    a(f"buffer_store_dwordx4 v[{PK}:{PK+3}], v126, s[28:31], s3 offen sc1")
    a("s_cmp_lg_u32 s33, 0")
    a("s_cbranch_scc1 L_kclr")
    a("s_and_b32 exec_lo, s44, 0xffff")
    a("s_mov_b32 exec_hi, 0")
    a("s_waitcnt vmcnt(0)")
    a(f"buffer_store_dwordx4 v[140:143], {vMlOff}, s[28:31], 0 offen offset:{REC} sc1")
    a("s_branch L_kp_end")
    a("L_kp_reflag:")
    a(f"s_sub_u32 {sSpin}, {sSpin}, 1")
    a("s_cbranch_scc1 L_kp_flagok")
    a(f"global_load_dword {vFlag}, {vFa}, s[16:17] sc1")
    a("s_branch L_kp_flag")
    c("---- K waves, next round or wrong guess: take the block offsets from the plan")
    a("L_kx:")
    a(f"s_mov_b32 {sFirst}, 0")
    a("s_waitcnt vmcnt(0) lgkmcnt(0)")
    a("s_barrier")
    a(f"ds_read_b64 v[4:5], v28 offset:{LDS_D}")
    a(f"s_mov_b32 s3, {sWi}")
    a("s_waitcnt lgkmcnt(0)")
    for i in range(4):
        a(f"v_readlane_b32 s{48+i}, v4, s3")
        a(f"v_readlane_b32 s{64+i}, v5, s3")
        if i < 3:
            a("s_add_u32 s3, s3, 4")
    kblock(0)
    a("s_nop 3")
    a("s_branch L_k12")
    c("---- consumer: a further chunk of producers follows")
    a("L_kc_chunk:")
    a("s_waitcnt vmcnt(0) lgkmcnt(0)")
    a("s_nop 7")
    for i in range(4):
        a(f"v_mov_b32 v{GX+i}, v{GY+i}")
    gen_addr()
    fetch()
    a("s_branch L_kc_w")
    a("L_fin:")
    if amp is not None:
        a("s_waitcnt vmcnt(0)")
        stamp(9)
        a("s_memrealtime s[84:85]")
        a("s_waitcnt lgkmcnt(0)")
        a(f"s_cmp_ge_u32 {sRole}, 8"); a("s_cbranch_scc1 L_end")
        if ampw == "k":
            a(f"s_cmpk_lg_u32 {sW}, 0xc0"); a("s_cbranch_scc1 L_end")
        if ampw == "v":
            a(f"s_cmpk_lt_u32 {sW}, 0x100"); a("s_cbranch_scc1 L_end")
        a("s_sub_u32 s86, s82, s80")
        a("s_min_u32 s86, s86, 5000")
        a(f"s_mul_i32 s86, s86, {ampk}")
        a("L_amp:")
        a("s_memrealtime s[88:89]")
        a("s_waitcnt lgkmcnt(0)")
        a("s_sub_u32 s88, s88, s84")
        a("s_cmp_lt_u32 s88, s86")
        a("s_cbranch_scc1 L_amp")
    if stamps:
        a("s_mov_b64 exec, -1")
        a("s_waitcnt vmcnt(0) lgkmcnt(0)")
        a("s_memtime s[100:101]")
        a("s_memrealtime s[82:83]")
        a("s_waitcnt vmcnt(0) lgkmcnt(0)")
        a("v_mov_b32 v1, s37")
        for i in range(22):
            a(f"v_writelane_b32 v1, s{80+i}, {i}")
        a("s_lshl_b32 s3, s2, 11")
        a(f"s_lshl2_add_u32 s3, {sW}, s3")
        a("s_add_u32 s3, s3, 0x800000")
        a("v_lshlrev_b32 v2, 2, v0")
        a("v_add_u32 v2, s3, v2")
        a("global_store_dword v2, v1, s[18:19]")
    a("L_end:")
    a("s_endpgm")

    body = finalize(L)
    pre = [HEADER.rstrip("\n"),
           f"; @launch grid=(256,1,1) block=(512,1,1) lds={LDS_BYTES}",
           DOC.strip("\n"), '.amdgcn_target "amdgcn-amd-amdhsa--gfx950"', ".text", f".globl {KN}",
           ".p2align 12", ".fill 832, 4, 0xbf810000", ".p2align 8", f".type {KN},@function"]
    post = ['.section .rodata,"a"', ".p2align 6", f".amdhsa_kernel {KN}",
            "  .amdhsa_next_free_vgpr 168", "  .amdhsa_next_free_sgpr 102", "  .amdhsa_accum_offset 168",
            "  .amdhsa_group_segment_fixed_size 0", "  .amdhsa_kernarg_size 64", "  .amdhsa_user_sgpr_count 2",
            "  .amdhsa_user_sgpr_kernarg_segment_ptr 1", "  .amdhsa_system_sgpr_workgroup_id_x 1",
            ".end_amdhsa_kernel"]
    return "\n".join(pre + body + post) + "\n"


VARIANTS = {
    "kf_hx": dict(), "kf_hx_st": dict(stamps=True), "kf_sp": dict(mapping="spread"), "kf_hx_bad": dict(badguess=True),
    "kf_far": dict(remote=True), "kf_amp": dict(amp=(0, 9)), "kf_v8": dict(vall=8), "kf_v9": dict(vall=9), "kf_v10": dict(vall=10), "kf_vp8": dict(vprod=8), "kf_vp7": dict(vprod=7), "kf_vp7_e23": dict(vprod=7, extra=23),
    "kf_v7_12": dict(vall=7, vend=12), "kf_v8_k9": dict(vall=8, kall=9), "kf_v8_e18": dict(vall=8, extra=18), "kf_v7": dict(vall=7), "kf_v6": dict(vall=6), "kf_v5": dict(vall=5), "kf_k7v7": dict(vall=7, kall=7), "kf_k6v6": dict(vall=6, kall=6),
    "kf_v6_e17": dict(vall=6, extra=17), "kf_v6_l3": dict(vall=6, lead=3), "kf_p10": dict(mapping="perm10234567"), "kf_p30": dict(mapping="perm31204567"), "kf_p70": dict(mapping="perm71234560"), "kf_p703": dict(mapping="perm71204563"),
    "d_f_start": dict(amp=(0, 1), ampk=40, ampw="k", entrystamp=False), "d_f_kland": dict(amp=(0, 4), ampk=10, ampw="k", entrystamp=False),
    "d_f_tail": dict(amp=(2, 9), ampk=40, ampw="k", entrystamp=False), "d_f_vdrain": dict(amp=(6, 7), ampk=20, ampw="v", entrystamp=False),
    "d_f_pv": dict(amp=(0, 7), ampk=10, ampw="v", entrystamp=False), "d_f_b1": dict(amp=(0, 5), ampk=10, ampw="v", entrystamp=False),
}
if __name__ == "__main__":
    for k, v in VARIANTS.items():
        open(f"work/{k}.s", "w").write(gen(**v))
    print(" ".join(VARIANTS))
```
